```python
import torch

def _softmax(x, axis=-1):
    return torch.softmax(x, dim=axis)
def _gelu(x):
    return torch.nn.functional.gelu(x, approximate="tanh")
def _silu(x):
    return torch.nn.functional.silu(x)
def _sigmoid(x):
    return torch.sigmoid(x)
def _layernorm(x, axis=-1, eps=1e-5):
    m = x.mean(dim=axis, keepdim=True)
    v = x.var(dim=axis, keepdim=True, unbiased=False)
    return (x - m) / torch.sqrt(v + eps)
def _scatter_add(tgt, idx, src, axis=0):
    return tgt.clone().index_add_(axis, idx, src)
def _segment_sum(src, seg, n):
    out = torch.zeros((n,) + src.shape[1:], dtype=src.dtype)
    return out.index_add_(0, seg, src)
def _pad(x, pw):
    flat = tuple(v for pair in reversed(pw) for v in pair)
    return torch.nn.functional.pad(x, flat)

kernel_name = 'sequential_preLN__compressed_kv_cla__mixer_token_mlp__prompt'

def setup_inputs():

    _w = (lambda a: (lambda t: t.to(torch.bfloat16) if t.is_floating_point() else t)(torch.as_tensor(a)))
    def _A_setup():
        B, H, Sq, Sk, D, M = 1, 32, 2048, 2048, 128, 576
        Dc = 4 * D
        return {
            "x": _w((lambda *s: torch.randn(*s, dtype=torch.bfloat16) * 0.05)(B, Sq, M)),
            "c_kv": _w((lambda *s: torch.randn(*s, dtype=torch.bfloat16) * 0.2)(B, Sk, Dc)),
            "w_q": _w((lambda *s: torch.randn(*s, dtype=torch.bfloat16) * 3.2)(M, H, D) * (M ** -0.5)),
            "w_uk": _w((lambda *s: torch.randn(*s, dtype=torch.bfloat16) * 6.4)(Dc, H, D) * (Dc ** -0.5)),
            "w_uv": _w((lambda *s: torch.randn(*s, dtype=torch.bfloat16) * 0.2)(Dc, H, D) * (Dc ** -0.5)),
            "w_o": _w((lambda *s: torch.randn(*s, dtype=torch.bfloat16) * 0.2)(H, D, M) * ((H * D) ** -0.5)),
        }
    _A_in = _A_setup()

    def _B_setup():
        B, S, D, F = 1, 2048, 576, 4608
        return {
            "x": _w((lambda *s: torch.randn(*s, dtype=torch.bfloat16) * 0.05)(B, S, D)),
            "w1": _w((lambda *s: torch.randn(*s, dtype=torch.bfloat16) * 0.4)(S, F) * (S ** -0.5)),
            "b1": _w((lambda *s: torch.randn(*s, dtype=torch.bfloat16) * 3.2)(F) * 0.02),
            "w2": _w((lambda *s: torch.randn(*s, dtype=torch.bfloat16) * 0.2)(F, S) * (F ** -0.5)),
            "b2": _w((lambda *s: torch.randn(*s, dtype=torch.bfloat16) * 0.8)(S) * 0.02),
        }
    _B_in = _B_setup()

    return {
        "A_x": _A_in["x"],
        "A_c_kv": _A_in["c_kv"],
        "A_w_q": _A_in["w_q"],
        "A_w_uk": _A_in["w_uk"],
        "A_w_uv": _A_in["w_uv"],
        "A_w_o": _A_in["w_o"],
        "B_x": _B_in["x"],
        "B_w1": _B_in["w1"],
        "B_b1": _B_in["b1"],
        "B_w2": _B_in["w2"],
        "B_b2": _B_in["b2"],
    }

def reference(A_x, A_c_kv, A_w_q, A_w_uk, A_w_uv, A_w_o, B_x, B_w1, B_b1, B_w2, B_b2):
    def _A_ref(x, c_kv, w_q, w_uk, w_uv, w_o):
        B, Sq, M = x.shape[0], x.shape[1], x.shape[2]
        Sk = c_kv.shape[1]
        H, D = w_q.shape[1], w_q.shape[2]
        q = torch.einsum("bqm,mhd->bhqd", x, w_q)
        k = torch.einsum("bkc,chd->bhkd", c_kv, w_uk)
        v = torch.einsum("bkc,chd->bhkd", c_kv, w_uv)
        scores = torch.einsum("bhqd,bhkd->bhqk", q, k) * (D ** -0.5)
        off = Sk - Sq
        qi = torch.arange(Sq)[:, None]
        kj = torch.arange(Sk)[None, :]
        cmask = kj <= (qi + off)
        scores = torch.where(cmask[None, None], scores, -1e9)
        p = _softmax(scores, axis=-1)
        ctx = torch.einsum("bhqk,bhkd->bhqd", p, v)
        return torch.einsum("bhqd,hdm->bqm", ctx, w_o)

    def _B_ref(x, w1, b1, w2, b2):
        B, S, D = x.shape
        h = _layernorm(x, axis=-1)
        u = torch.einsum("bsd,sf->bdf", h, w1) + b1
        u = _gelu(u)
        y = torch.einsum("bdf,fs->bds", u, w2) + b2
        return (lambda x, *d: x.permute(*d))(y, 0, 2, 1)

    x = A_x
    h = x + _A_ref(_layernorm(x, axis=-1), A_c_kv, A_w_q, A_w_uk, A_w_uv, A_w_o)
    h2 = h + _B_ref(_layernorm(h, axis=-1), B_w1, B_b1, B_w2, B_b2)
    return h2
```

```python
XN,KF,VF,CTX,PART,HB,HN,UB=0,0x400000,0x1400000,0x2400000,0x3400000,0x4C00000,0x5000000,0x5400000
class K:
    def __init__(s,name,nv,threads,grid,lds):
        s.name,s.nv,s.threads,s.grid,s.lds=name,nv,threads,grid,lds; s.L=[]; s.n=0
    def __call__(s,*ls):
        for l in ls:
            if isinstance(l,(list,tuple)): s(*l)
            else: s.L+= [x.strip() for x in l.split('\n') if x.strip()]
    def lab(s,p='L'):
        s.n+=1; return f'.{s.name}_{p}{s.n}'
    def head(s):
        s(f's_cmp_ge_u32 s2, {s.grid}',f's_cbranch_scc1 .{s.name}_end')
    def srd(s,r,slot,size,off=0):
        if off: s(f's_add_u32 s{r}, s{r}, {off}',f's_addc_u32 s{r+1}, s{r+1}, 0')
        s(f's_mov_b32 s{r+2}, {size}',f's_mov_b32 s{r+3}, 0x20000')
    def srds(s,lst):
        for r,slot,size,off in lst: s(f's_load_dwordx2 s[{r}:{r+1}], s[0:1], {slot*8}')
        s('s_waitcnt lgkmcnt(0)')
        for x in lst: s.srd(*x)
    def text(s):
        return '\n'.join([f'.globl {s.name}_kernel','.p2align 8',f'.type {s.name}_kernel,@function',f'{s.name}_kernel:']+s.L+[f'.{s.name}_end:','s_endpgm'])
    def desc(s):
        return f'''.p2align 6
.amdhsa_kernel {s.name}_kernel
  .amdhsa_next_free_vgpr {s.nv}
  .amdhsa_next_free_sgpr 102
  .amdhsa_accum_offset {(s.nv+3)//4*4}
  .amdhsa_group_segment_fixed_size 0
  .amdhsa_kernarg_size 112
  .amdhsa_user_sgpr_count 2
  .amdhsa_user_sgpr_kernarg_segment_ptr 1
  .amdhsa_system_sgpr_workgroup_id_x 1
.end_amdhsa_kernel'''
def R(a,n): return f'v[{a}:{a+n-1}]'
def mf(d,a,b,c=None): return f'v_mfma_f32_32x32x16_bf16 {R(d,16)}, {R(a,4)}, {R(b,4)}, '+(R(d,16) if c is None else ('0' if c=='0' else R(c,16)))
def weave(m,f,skip=0):
    out=[];n=len(m)-skip
    for i,x in enumerate(m):
        out.append(x)
        if i>=skip:
            j=i-skip; out+=f[len(f)*j//n:len(f)*(j+1)//n]
    return out
class Op:
    def __init__(s,typ,rows,lo,srd,so,stride,perm=False):
        s.typ,s.rows,s.lo,s.srd,s.so,s.stride,s.perm=typ,rows,lo,srd,so,stride,perm
        s.np=rows//8; s.adv={'KC':128,'TR':64*stride,'FL':4096}[typ]
    def dma_setup(s,k,v,nw,sw):
        n=s.np//nw; s.dv=v; s.n=n
        for j in range(n):
            d=v+j
            k(f's_mul_i32 s4, s{sw}, {n}',f's_add_u32 s4, s4, {j}')
            if s.typ=='KC':
                k(f's_lshl_b32 s4, s4, 3','v_lshrrev_b32 v1, 3, v0','v_add_u32 v1, s4, v1','v_bfe_u32 v2, v1, 1, 3','v_and_b32 v3, 7, v0','v_xor_b32 v2, v2, v3',
                  f'v_mul_u32_u24 v1, {s.stride}, v1',f'v_lshl_add_u32 v{d}, v2, 4, v1')
            elif s.typ=='FL':
                k('s_lshr_b32 s5, s4, 2',f's_mul_i32 s5, s5, {s.stride}','s_and_b32 s4, s4, 3','s_lshl_b32 s4, s4, 10','s_add_u32 s4, s4, s5',f'v_lshl_add_u32 v{d}, v0, 4, s4')
            else:
                c=s.rows//8; mg=(65536+c-1)//c
                assert all((x*mg)>>16==x//c for x in range(64*c))
                k('s_lshl_b32 s4, s4, 6','v_add_u32 v1, s4, v0',f'v_mul_u32_u24 v2, {mg}, v1','v_lshrrev_b32 v2, 16, v2',f'v_mul_u32_u24 v3, {c}, v2','v_sub_u32 v3, v1, v3')
                if s.rows in(128,256): k('v_and_b32 v4, 3, v2','v_lshlrev_b32 v4, 2, v4','v_xor_b32 v3, v3, v4')
                if s.rows==192: k('v_and_b32 v4, 2, v2','v_lshlrev_b32 v4, 1, v4','v_xor_b32 v3, v3, v4')
                k(f'v_mul_u32_u24 v2, {s.stride}, v2',f'v_lshl_add_u32 v{d}, v3, 4, v2')
        return v+n
    def dma(s,sm):
        o=[]
        for j in range(s.n):
            o.append([f's_add_u32 m0, s{sm}, s{s.sw0}'] if j==0 else [f's_add_u32 m0, m0, 1024'])
            o[-1]+=['s_nop 0',f'buffer_load_dwordx4 v{s.dv+j}, s[{s.srd}:{s.srd+3}], s{s.so} offen lds']
        o[-1].append(f's_add_u32 s{s.so}, s{s.so}, {s.adv}')
        return o
    def rd_setup(s,k,v,sb,nb,slo=None):
        s.rv=v; s.nb=nb
        if s.typ=='KC':
            k('v_and_b32 v1, 31, v0','v_bfe_u32 v2, v0, 1, 3','v_lshrrev_b32 v3, 5, v0','v_lshlrev_b32 v1, 7, v1',f's_lshl_b32 s4, s{sb}, 12',f's_add_u32 s4, s4, {s.lo}','v_add_u32 v1, s4, v1')
            k('v_bfe_u32 v2, v0, 1, 4','v_and_b32 v2, 7, v2')
            for i in range(4): k(f'v_or_b32 v4, {2*i}, v3','v_xor_b32 v4, v4, v2',f'v_lshl_add_u32 v{v+i}, v4, 4, v1')
            s.nr=4
        elif s.typ=='FL':
            k(f's_lshl_b32 s4, s{sb}, 12',f's_add_u32 s4, s4, {s.lo}',f'v_lshl_add_u32 v{v}, v0, 4, s4'); s.nr=1
        else:
            W=s.rows
            k('v_bfe_u32 v1, v0, 2, 2','v_lshrrev_b32 v2, 5, v0',f'v_lshl_add_u32 v2, v2, {2 if s.perm else 3}, v1',f'v_mul_u32_u24 v2, {2*W}, v2',
              'v_bfe_u32 v3, v0, 4, 1','v_lshl_add_u32 v2, v3, 5, v2','v_and_b32 v3, 3, v0','v_lshl_add_u32 v2, v3, 3, v2',f'v_add_u32 v2, {s.lo}, v2')
            if W==192: k('v_lshrrev_b32 v1, 1, v1')
            if W==96: k('v_mov_b32 v1, 0')
            for b in range(nb): k(f's_add_u32 s4, s{sb}, {b}','v_xor_b32 v3, s4, v1',f'v_lshl_add_u32 v{v+b}, v3, 6, v2')
            s.nr=nb
        if slo is not None:
            for i in range(s.nr): k(f'v_add_u32 v{v+i}, s{slo}, v{v+i}')
        return v+s.nr
    def rd(s,i,f):
        o=[]
        for b in range(s.nb):
            d=f+4*b
            if s.typ=='KC': o.append(f'ds_read_b128 {R(d,4)}, v{s.rv+i} offset:{b*4096}')
            elif s.typ=='FL': o.append(f'ds_read_b128 {R(d,4)}, v{s.rv} offset:{b*4096+i*1024}')
            else:
                for e in range(2): o.append(f'ds_read_b64_tr_b16 {R(d+2*e,2)}, v{s.rv+b} offset:{(16*i+e*(8 if s.perm else 4))*2*s.rows}')
        return o
    def bump(s,sd): return [f'v_add_u32 v{s.rv+i}, s{sd}, v{s.rv+i}' for i in range(s.nr)]
def gemm(k,dops,A,B,acc,fr,NS,SS,ns,slices,dma,mma,hook=None):
    per=sum(o.n for o in dops) if dma else 0
    def issue():
        o=[]
        pre=['s_cmp_gt_i32 s44, 0']+[f's_cselect_b32 s{x.srd+2}, s{x.srd+2}, 0' for x in dops]+['s_sub_u32 s44, s44, 1']
        for x in dops: o+=x.dma(41)
        o[0]=pre+o[0]
        o[-1]+=[f's_add_u32 s41, s41, {SS}',f's_cmp_eq_u32 s41, {SS*NS}','s_cselect_b32 s41, 0, s41']
        return o
    k(f's_mov_b32 s40, {ns}',f's_mov_b32 s44, {ns}','s_mov_b32 s41, 0','s_mov_b32 s43, 0',f's_mov_b32 s45, {SS}')
    if dma:
        for _ in range(NS): k(issue())
    if hook: hook()
    if mma:
        na,nb=A.nb,B.nb; fs=4*(na+nb)
        for r in range(16*na*nb): k(f'v_mov_b32 v{acc+r}, 0')
        rds=lambda i,p: A.rd(i,fr+p*fs)+B.rd(i,fr+p*fs+4*na)
        mm=lambda p: [mf(acc+16*(a*nb+b),fr+p*fs+4*a,fr+p*fs+4*(na+b)) for a in range(na) for b in range(nb)]
    if dma: k(f's_waitcnt vmcnt({per*(NS-1)})')
    k('s_barrier')
    if mma: k(rds(slices[0],0))
    L=k.lab(); k(L+':')
    n=len(slices); assert n%2==0
    if mma:
        for j in range(n-1):
            r=rds(slices[j+1],(j+1)&1); h=min(len(r),3)
            k(r[:h],f's_waitcnt lgkmcnt({h})',weave(mm(j&1),r[h:]))
        k(f's_add_u32 s43, s43, {SS}',f's_cmp_eq_u32 s43, {SS*NS}',f's_cselect_b32 s42, {-SS*(NS-1)}, s45','s_cselect_b32 s43, 0, s43')
        k('s_waitcnt lgkmcnt(0)',A.bump(42),B.bump(42))
    if dma: k(f's_waitcnt vmcnt({per*(NS-2)})')
    k('s_barrier')
    f=issue() if dma else []
    if mma:
        r=rds(slices[0],0); k(weave(mm(1),[r[:3]]+[[x] for x in r[3:]]+f))
    else: k(f)
    k('s_sub_u32 s40, s40, 1','s_cmp_lg_u32 s40, 0',f's_cbranch_scc1 {L}')
    k('s_waitcnt vmcnt(0) lgkmcnt(0)','s_nop 7','s_nop 7')
def prolog(k):
    k.head(); k('v_readfirstlane_b32 s3, v0','v_and_b32 v0, 63, v0','s_lshr_b32 s3, s3, 6')
def cvt8(d,a): return [f'v_cvt_pk_bf16_f32 v{d+i}, v{a+2*i}, v{a+2*i+1}' for i in range(4)]

def allred(k,v,t,rors,op='add'):
    for r in rors: k('s_nop 1',f'v_{op}_f32_dpp v{v}, v{v}, v{v} row_ror:{r} row_mask:0xf bank_mask:0xf')
    for p in (16,32): k(f'v_mov_b32 v{t}, v{v}','s_nop 1',f'v_permlane{p}_swap_b32 v{t}, v{v}','s_nop 1',f'v_{op}_f32 v{v}, v{v}, v{t}')
def rsq_eps(k,v,t):
    k(f'v_mov_b32 v{t}, 0x3727c5ac',f'v_fmac_f32 v{t}, 0x3ae38e39, v{v}',f'v_rsq_f32 v{v}, v{t}','s_nop 0',
      f'v_mul_f32 v{t}, v{t}, v{v}',f'v_mul_f32 v{t}, v{t}, v{v}',f'v_fma_f32 v{t}, v{t}, -0.5, 1.0',f'v_add_f32 v{t}, 0.5, v{t}',f'v_mul_f32 v{v}, v{v}, v{t}')
```

```python
import sys,importlib
from core import *
N='sequential_preLN__compressed_kv_cla__mixer_token_mlp__prompt'
def build(ks,path):
    ref=open(f'cdna_kernels/{N}.s.ref').read().split('\n')
    hd=[l for l in ref if l.startswith(';') and 'offset' in l or l.startswith('; Kernarg')]
    o=hd+[f'; @launch kernel={k.name}_kernel grid=({k.grid},1,1) block=({k.threads},1,1) lds={k.lds}' for k in ks]
    o+=['.amdgcn_target "amdgcn-amd-amdhsa--gfx950"','.text']+[k.text() for k in ks]+['.section .rodata,"a"']+[k.desc() for k in ks]
    open(path,'w').write('\n'.join(o)+'\n')
if __name__=='__main__':
    ks=[]
    for m,fs in (('k1',['k1']),('k2',['k2']),('k3',['k3','k4','k5','k6','k7'])):
        try: mod=importlib.import_module(m)
        except ModuleNotFoundError: continue
        ks+=[getattr(mod,f)() for f in fs]
    build(ks,sys.argv[1] if len(sys.argv)>1 else f'cdna_kernels/{N}.s')
```

```python
import os
XN,KF,VF,CTX,PART,HB,HN,UB=0,0x400000,0x1400000,0x2410000,0x400000,0x1A80000,0x1CC0000,0x1F00000
if os.environ.get('NOAL'): PART,HB,HN,UB=0x3500000,0x4C00000,0x5000000,0x5400000
class K:
    def __init__(s,name,nv,threads,grid,lds):
        s.name,s.nv,s.threads,s.grid,s.lds=name,nv,threads,grid,lds; s.L=[]; s.n=0
    def __call__(s,*ls):
        for l in ls:
            if isinstance(l,(list,tuple)): s(*l)
            else: s.L+= [x.strip() for x in l.split('\n') if x.strip()]
    def lab(s,p='L'):
        s.n+=1; return f'.{s.name}_{p}{s.n}'
    def head(s):
        s(f's_cmp_ge_u32 s2, {s.grid}',f's_cbranch_scc1 .{s.name}_end')
    def srd(s,r,slot,size,off=0):
        if off: s(f's_add_u32 s{r}, s{r}, {off}',f's_addc_u32 s{r+1}, s{r+1}, 0')
        s(f's_mov_b32 s{r+2}, {size}',f's_mov_b32 s{r+3}, 0x20000')
    def srds(s,lst):
        for r,slot,size,off in lst: s(f's_load_dwordx2 s[{r}:{r+1}], s[0:1], {slot*8}')
        s('s_waitcnt lgkmcnt(0)')
        for x in lst: s.srd(*x)
    def text(s):
        return '\n'.join([f'.globl {s.name}_kernel','.p2align 8',f'.type {s.name}_kernel,@function',f'{s.name}_kernel:']+s.L+[f'.{s.name}_end:','s_endpgm'])
    def desc(s):
        return f'''.p2align 6
.amdhsa_kernel {s.name}_kernel
  .amdhsa_next_free_vgpr {s.nv}
  .amdhsa_next_free_sgpr 102
  .amdhsa_accum_offset {(s.nv+3)//4*4}
  .amdhsa_group_segment_fixed_size 0
  .amdhsa_kernarg_size 112
  .amdhsa_user_sgpr_count 2
  .amdhsa_user_sgpr_kernarg_segment_ptr 1
  .amdhsa_system_sgpr_workgroup_id_x 1
.end_amdhsa_kernel'''
def R(a,n): return f'v[{a}:{a+n-1}]'
def mf(d,a,b,c=None): return f'v_mfma_f32_32x32x16_bf16 {R(d,16)}, {R(a,4)}, {R(b,4)}, '+(R(d,16) if c is None else ('0' if c=='0' else R(c,16)))
def front(m,f,per):
    out=[]
    for i,x in enumerate(m): out.append(x); out+=f[per*i:per*(i+1)] if i<len(m)-1 else f[per*i:]
    return out
def mix(a,b):
    if not b: return list(a)
    o=[]
    for i,x in enumerate(b): o+=a[len(a)*i//len(b):len(a)*(i+1)//len(b)]+[x]
    return o
def weave(m,f,skip=0):
    out=[];n=len(m)-skip
    for i,x in enumerate(m):
        out.append(x)
        if i>=skip:
            j=i-skip; out+=f[len(f)*j//n:len(f)*(j+1)//n]
    return out
class Op:
    def __init__(s,typ,rows,lo,srd,so,stride,perm=False):
        s.typ,s.rows,s.lo,s.srd,s.so,s.stride,s.perm=typ,rows,lo,srd,so,stride,perm
        s.np=rows//8; s.adv={'KC':128,'TR':64*stride,'FL':4096}[typ]
    def dma_setup(s,k,v,nw,sw):
        n=s.np//nw; s.dv=v; s.n=n
        for j in range(n):
            d=v+j
            k(f's_mul_i32 s4, s{sw}, {n}',f's_add_u32 s4, s4, {j}')
            if s.typ=='KC':
                k(f's_lshl_b32 s4, s4, 3','v_lshrrev_b32 v1, 3, v0','v_add_u32 v1, s4, v1','v_bfe_u32 v2, v1, 1, 3','v_and_b32 v3, 7, v0','v_xor_b32 v2, v2, v3',
                  f'v_mul_u32_u24 v1, {s.stride}, v1',f'v_lshl_add_u32 v{d}, v2, 4, v1')
            elif s.typ=='FL':
                k('s_lshr_b32 s5, s4, 2',f's_mul_i32 s5, s5, {s.stride}','s_and_b32 s4, s4, 3','s_lshl_b32 s4, s4, 10','s_add_u32 s4, s4, s5',f'v_lshl_add_u32 v{d}, v0, 4, s4')
            else:
                c=s.rows//8; mg=(65536+c-1)//c
                assert all((x*mg)>>16==x//c for x in range(64*c))
                k('s_lshl_b32 s4, s4, 6','v_add_u32 v1, s4, v0',f'v_mul_u32_u24 v2, {mg}, v1','v_lshrrev_b32 v2, 16, v2',f'v_mul_u32_u24 v3, {c}, v2','v_sub_u32 v3, v1, v3')
                if s.rows in(128,256): k('v_and_b32 v4, 3, v2','v_lshlrev_b32 v4, 2, v4','v_xor_b32 v3, v3, v4')
                if s.rows==192: k('v_and_b32 v4, 2, v2','v_lshlrev_b32 v4, 1, v4','v_xor_b32 v3, v3, v4')
                k(f'v_mul_u32_u24 v2, {s.stride}, v2',f'v_lshl_add_u32 v{d}, v3, 4, v2')
        return v+n
    def dma(s,sm):
        o=[]
        for j in range(s.n):
            o.append([f's_add_u32 m0, s{sm}, s{s.sw0}'] if j==0 else [f's_add_u32 m0, m0, 1024'])
            o[-1]+=['s_nop 0',f'buffer_load_dwordx4 v{s.dv+j}, s[{s.srd}:{s.srd+3}], s{s.so} offen lds']
        o[-1].append(f's_add_u32 s{s.so}, s{s.so}, {s.adv}')
        if os.environ.get('SAME')=='2' and s.so in(50,51): o[-1]+=[f's_cmp_ge_u32 s{s.so}, {4*s.adv}',f's_cselect_b32 s{s.so}, 0, s{s.so}']
        return o
    def rd_setup(s,k,v,sb,nb,slo=None):
        s.rv=v; s.nb=nb
        if s.typ=='KC':
            k('v_and_b32 v1, 31, v0','v_bfe_u32 v2, v0, 1, 3','v_lshrrev_b32 v3, 5, v0','v_lshlrev_b32 v1, 7, v1',f's_lshl_b32 s4, s{sb}, 12',f's_add_u32 s4, s4, {s.lo}','v_add_u32 v1, s4, v1')
            k('v_bfe_u32 v2, v0, 1, 4','v_and_b32 v2, 7, v2')
            for i in range(4): k(f'v_or_b32 v4, {2*i}, v3','v_xor_b32 v4, v4, v2',f'v_lshl_add_u32 v{v+i}, v4, 4, v1')
            s.nr=4
        elif s.typ=='FL':
            k(f's_lshl_b32 s4, s{sb}, 12',f's_add_u32 s4, s4, {s.lo}',f'v_lshl_add_u32 v{v}, v0, 4, s4'); s.nr=1
        else:
            W=s.rows
            k('v_bfe_u32 v1, v0, 2, 2','v_lshrrev_b32 v2, 5, v0',f'v_lshl_add_u32 v2, v2, {2 if s.perm else 3}, v1',f'v_mul_u32_u24 v2, {2*W}, v2',
              'v_bfe_u32 v3, v0, 4, 1','v_lshl_add_u32 v2, v3, 5, v2','v_and_b32 v3, 3, v0','v_lshl_add_u32 v2, v3, 3, v2',f'v_add_u32 v2, {s.lo}, v2')
            if W==192: k('v_lshrrev_b32 v1, 1, v1')
            if W==96: k('v_mov_b32 v1, 0')
            for b in range(nb): k(f's_add_u32 s4, s{sb}, {b}','v_xor_b32 v3, s4, v1',f'v_lshl_add_u32 v{v+b}, v3, 6, v2')
            s.nr=nb
        if slo is not None:
            for i in range(s.nr): k(f'v_add_u32 v{v+i}, s{slo}, v{v+i}')
        return v+s.nr
    def rd(s,i,f):
        o=[]
        for b in range(s.nb):
            d=f+4*b
            if s.typ=='KC': o.append(f'ds_read_b128 {R(d,4)}, v{s.rv+i} offset:{b*4096}')
            elif s.typ=='FL': o.append(f'ds_read_b128 {R(d,4)}, v{s.rv} offset:{b*4096+i*1024}')
            else:
                for e in range(2): o.append(f'ds_read_b64_tr_b16 {R(d+2*e,2)}, v{s.rv+b} offset:{(16*i+e*(8 if s.perm else 4))*2*s.rows}')
        return o
    def bump(s,sd): return [f'v_add_u32 v{s.rv+i}, s{sd}, v{s.rv+i}' for i in range(s.nr)]
def pf_setup(k,specs,NS,v):
    L1,L2=k.lab(),k.lab(); k('s_bitcmp1_b32 s3, 1',f's_cbranch_scc1 {L1}')
    for i,(o,G,rk) in enumerate(specs):
        if i: k(L1+':')
        L=(o.rows*2+127)//128 if o.typ=='TR' else 32
        tot=64*L if o.typ=='TR' else o.rows; n=-(-tot//(2*G)); mg=(65536+L-1)//L
        assert n<=64 and all((x*mg)>>16==x//L for x in range(2*G*n+64))
        k(f's_lshl_b32 s4, s{rk}, 1','s_and_b32 s5, s3, 1','s_add_u32 s4, s4, s5',f's_mul_i32 s4, s4, {n}','v_add_u32 v1, s4, v0',
          f'v_mul_u32_u24 v2, {mg}, v1','v_lshrrev_b32 v2, 16, v2',f'v_mul_u32_u24 v3, {L}, v2','v_sub_u32 v3, v1, v3',f'v_mul_u32_u24 v2, {o.stride}, v2','v_lshl_add_u32 v2, v3, 7, v2',
          f's_add_u32 s4, s{o.so}, {NS*o.adv}','v_add_u32 v2, s4, v2','v_mov_b32 v3, 0x7f000000',f'v_cmp_gt_u32 vcc, {n}, v0','s_nop 1','v_cndmask_b32 v2, v3, v2, vcc',f'v_cmp_gt_u32 vcc, {tot}, v1','s_nop 1',
          f'v_cndmask_b32 v{v}, v3, v2, vcc',f's_mov_b32 s67, {o.adv}',f's_mov_b64 s[24:25], s[{o.srd}:{o.srd+1}]',f's_mov_b64 s[26:27], s[{o.srd+2}:{o.srd+3}]')
        if not i: k(f's_branch {L2}')
    k(L2+':')
def gemm(k,dops,A,B,acc,fr,NS,SS,ns,slices,dma,mma,hook=None,pf=None,spr=1,pre=None,tail=None):
    per=sum(o.n for o in dops) if dma else 0
    FP=0 if dma else int(os.environ.get('FP',2))
    def issue():
        o=[]
        pre=['s_cmp_gt_i32 s44, 0']+[f's_cselect_b32 s{x.srd+2}, s{x.srd+2}, 0' for x in dops]+['s_sub_u32 s44, s44, 1']
        for x in dops: o+=x.dma(41)
        if tail:
            pre=['s_mov_b32 s46, s44','s_sub_u32 s44, s44, 1']
            for i in range(len(o)):
                L=k.lab(); o[i]=['s_cmp_gt_i32 s46, 0',f's_cbranch_scc0 {L}']+o[i]+[L+':']
        o[0]=pre+o[0]
        o[-1]+=[f's_add_u32 s41, s41, {SS}',f's_cmp_eq_u32 s41, {SS*NS}','s_cselect_b32 s41, 0, s41']
        return o
    k(f's_mov_b32 s40, {ns}',f's_mov_b32 s44, {ns}','s_mov_b32 s41, 0','s_mov_b32 s43, 0',f's_mov_b32 s45, {SS}')
    part=lambda q: issue()[per*q//spr:per*(q+1)//spr]
    if pre: pre()
    if dma:
        for _ in range(NS-1): k(issue())
        k(part(0))
    if hook: hook()
    if pf:
        pv,D=pf; pfi=[f'buffer_load_dword v{pv+1}, v{pv}, s[24:27], 0 offen',f'v_add_u32 v{pv}, s67, v{pv}']
        for _ in range(D): k(pfi)
    if mma:
        na,nb=A.nb,B.nb; fs=4*(na+nb)
        for r in range(16*na*nb): k(f'v_mov_b32 v{acc+r}, 0')
        rds=lambda i,p: A.rd(i,fr+p*fs)+B.rd(i,fr+p*fs+4*na)
        mm=lambda p: [mf(acc+16*(a*nb+b),fr+p*fs+4*a,fr+p*fs+4*(na+b)) for a in range(na) for b in range(nb)]
    if dma: k(f's_waitcnt vmcnt({per*(NS-2)+per//spr})')
    k('s_barrier')
    if mma: k(rds(slices[0],0))
    L=k.lab(); k(L+':')
    n=len(slices); assert n%2==0
    if mma:
        for j in range(n-1):
            r=rds(slices[j+1],(j+1)&1); h=min(len(r),3)
            k(r[:h],f's_waitcnt lgkmcnt({h})',(front(mm(j&1),r[h:],FP) if FP else weave(mm(j&1),mix(r[h:],part(j+1) if dma and j+1<spr else []))))
        k(f's_add_u32 s43, s43, {SS}',f's_cmp_eq_u32 s43, {SS*NS}',f's_cselect_b32 s42, {-SS*(NS-1)}, s45','s_cselect_b32 s43, 0, s43')
        k('s_waitcnt lgkmcnt(0)',A.bump(42),B.bump(42))
    if dma: k(f's_waitcnt vmcnt({per*(NS-2)})')
    if tail: L2=k.lab(); k('s_cmp_eq_u32 s40, 2',f's_cbranch_scc0 {L2}','s_waitcnt vmcnt(4)',L2+':')
    k('s_barrier')
    f=part(0) if dma else []
    if tail: f=tail+f
    if pf: f=f+[[f's_cmp_gt_u32 s40, {NS+D}','s_cselect_b32 s26, s26, 0']+pfi]
    if mma:
        r=rds(slices[0],0); k(r[:3],front(mm(1),r[3:]+f,FP)) if FP else k(weave(mm(1),[r[:3]]+mix(r[3:],f)))
    else: k(f)
    k('s_sub_u32 s40, s40, 1','s_cmp_lg_u32 s40, 0',f's_cbranch_scc1 {L}')
    k('s_waitcnt lgkmcnt(0)' if tail else 's_waitcnt vmcnt(0) lgkmcnt(0)','s_nop 7','s_nop 7')
def prolog(k):
    k.head(); k('v_readfirstlane_b32 s3, v0','v_and_b32 v0, 63, v0','s_lshr_b32 s3, s3, 6')
def cvt8(d,a): return [f'v_cvt_pk_bf16_f32 v{d+i}, v{a+2*i}, v{a+2*i+1}' for i in range(4)]

def allred(k,v,t,rors,op='add'):
    for r in rors: k('s_nop 1',f'v_{op}_f32_dpp v{v}, v{v}, v{v} row_ror:{r} row_mask:0xf bank_mask:0xf')
    for p in (16,32): k(f'v_mov_b32 v{t}, v{v}','s_nop 1',f'v_permlane{p}_swap_b32 v{t}, v{v}','s_nop 1',f'v_{op}_f32 v{v}, v{v}, v{t}')
def rsq_eps(k,v,t):
    k(f'v_mov_b32 v{t}, 0x3727c5ac',f'v_fmac_f32 v{t}, 0x3ae38e39, v{v}',f'v_rsq_f32 v{v}, v{t}','s_nop 0',
      f'v_mul_f32 v{t}, v{t}, v{v}',f'v_mul_f32 v{t}, v{t}, v{v}',f'v_fma_f32 v{t}, v{t}, -0.5, 1.0',f'v_add_f32 v{t}, 0.5, v{t}',f'v_mul_f32 v{v}, v{v}, v{t}')
```

```python
import sys,importlib
from core import *
N='sequential_preLN__compressed_kv_cla__mixer_token_mlp__prompt'
def build(ks,path):
    ref=open(f'cdna_kernels/{N}.s.ref').read().split('\n')
    hd=[l for l in ref if l.startswith(';') and 'offset' in l or l.startswith('; Kernarg')]
    o=hd+[f'; @launch kernel={k.name}_kernel grid=({k.grid},1,1) block=({k.threads},1,1) lds={k.lds}' for k in ks]
    o+=['.amdgcn_target "amdgcn-amd-amdhsa--gfx950"','.text']+[k.text() for k in ks]+['.section .rodata,"a"']+[k.desc() for k in ks]
    open(path,'w').write('\n'.join(o)+'\n')
if __name__=='__main__':
    ks=[]
    for m,fs in (('k1',['k1']),('k2',['k2']),('k3',['k3','k4','k5','k6','k7'])):
        try: mod=importlib.import_module(m)
        except ModuleNotFoundError: continue
        ks+=[getattr(mod,f)() for f in fs]
    import os
    for e in os.environ.get('EXP','').split(','):
        if e:
            for k in ks: k.L=[l for l in k.L if not l.startswith(e)]
    if os.environ.get('TIM'):
        for i,k in enumerate(ks):
            fin=['s_memtime s[94:95]','s_memrealtime s[96:97]','s_load_dwordx2 s[98:99], s[0:1], 96','s_waitcnt lgkmcnt(0)','s_sub_u32 s94, s94, s90','s_sub_u32 s96, s96, s92',
              'v_mov_b32 v2, s94','v_mov_b32 v3, s96','v_mov_b32 v1, 0','s_cmp_eq_u32 s2, 8','s_cselect_b64 exec, 1, 0',f'global_store_dwordx2 v1, v[2:3], s[98:99] offset:{8*i}']
            L=k.L[:2]+['s_memtime s[90:91]','s_memrealtime s[92:93]']
            for l in k.L[2:]: L+= fin+[l] if l=='s_endpgm' else [l]
            k.L=[l.replace('.attn_end','.attn_fin') if j>2 else l for j,l in enumerate(L)]+(['.attn_fin:'] if k.name=='attn' else [])+fin
    for k in ks:
        st=os.environ.get('ST','sc1'); ld=os.environ.get('LD','')
        if k.name not in os.environ.get('NOST','ln2,fin').split(','): k.L=[l+' '+st if l.startswith('buffer_store') else l for l in k.L]
        w={'mlp1':'s[8:11]','mlp2':'s[12:15]','oproj':'s[12:15]','ln2':'s[8:11]','fin':'s[8:11]'}.get(k.name)
        if w and ld: k.L=[(l.replace(' lds',' '+ld+' lds') if ' lds' in l else l+' '+ld) if l.startswith('buffer_load_dwordx4') and w in l else l for l in k.L]
    for k in ks:
        L=[]
        for l in k.L:
            if l.startswith('TM '):
                if os.environ.get('TIM'):
                    n=int(l[3:]); L+=['s_memtime s[94:95]','s_load_dwordx2 s[98:99], s[0:1], 96','s_waitcnt lgkmcnt(0)','s_sub_u32 s94, s94, s90','v_mov_b32 v250, s94','v_mov_b32 v251, 0','s_cmp_eq_u32 s2, 8','s_cselect_b64 exec, 1, 0',
                      f'global_store_dword v251, v250, s[98:99] offset:{64+4*n}','s_mov_b64 exec, -1']; k.nv=256
            else: L.append(l)
        k.L=L
    build(ks,sys.argv[1] if len(sys.argv)>1 else f'cdna_kernels/{N}.s')
```

```python
import os
XN,KF,VF,CTX,PART,HB,HN,UB=0,0x400000,0x1400000,0x2410000,0x400000,0x1A80000,0x1CC0000,0x1F00000
if os.environ.get('NOAL'): PART,HB,HN,UB=0x3500000,0x4C00000,0x5000000,0x5400000
class K:
    def __init__(s,name,nv,threads,grid,lds):
        s.name,s.nv,s.threads,s.grid,s.lds=name,nv,threads,grid,lds; s.L=[]; s.n=0
    def __call__(s,*ls):
        for l in ls:
            if isinstance(l,(list,tuple)): s(*l)
            else: s.L+= [x.strip() for x in l.split('\n') if x.strip()]
    def lab(s,p='L'):
        s.n+=1; return f'.{s.name}_{p}{s.n}'
    def head(s):
        s(f's_cmp_ge_u32 s2, {s.grid}',f's_cbranch_scc1 .{s.name}_end')
    def srd(s,r,slot,size,off=0):
        if off: s(f's_add_u32 s{r}, s{r}, {off}',f's_addc_u32 s{r+1}, s{r+1}, 0')
        s(f's_mov_b32 s{r+2}, {size}',f's_mov_b32 s{r+3}, 0x20000')
    def srds(s,lst,defer=False):
        for r,slot,size,off in lst: s(f's_load_dwordx2 s[{r}:{r+1}], s[0:1], {slot*8}')
        s.pend=lst
        if not defer: s.fin()
    def fin(s):
        s('s_waitcnt lgkmcnt(0)')
        for x in s.pend: s.srd(*x)
    def text(s):
        return '\n'.join([f'.globl {s.name}_kernel','.p2align 8',f'.type {s.name}_kernel,@function',f'{s.name}_kernel:']+s.L+[f'.{s.name}_end:','s_endpgm'])
    def desc(s):
        return f'''.p2align 6
.amdhsa_kernel {s.name}_kernel
  .amdhsa_next_free_vgpr {s.nv}
  .amdhsa_next_free_sgpr 102
  .amdhsa_accum_offset {(s.nv+3)//4*4}
  .amdhsa_group_segment_fixed_size 0
  .amdhsa_kernarg_size 112
  .amdhsa_user_sgpr_count 2
  .amdhsa_user_sgpr_kernarg_segment_ptr 1
  .amdhsa_system_sgpr_workgroup_id_x 1
.end_amdhsa_kernel'''
def R(a,n): return f'v[{a}:{a+n-1}]'
def mf(d,a,b,c=None): return f'v_mfma_f32_32x32x16_bf16 {R(d,16)}, {R(a,4)}, {R(b,4)}, '+(R(d,16) if c is None else ('0' if c=='0' else R(c,16)))
def front(m,f,per):
    out=[]
    for i,x in enumerate(m): out.append(x); out+=f[per*i:per*(i+1)] if i<len(m)-1 else f[per*i:]
    return out
def mix(a,b):
    if not b: return list(a)
    o=[]
    for i,x in enumerate(b): o+=a[len(a)*i//len(b):len(a)*(i+1)//len(b)]+[x]
    return o
def weave(m,f,skip=0):
    out=[];n=len(m)-skip
    for i,x in enumerate(m):
        out.append(x)
        if i>=skip:
            j=i-skip; out+=f[len(f)*j//n:len(f)*(j+1)//n]
    return out
class Op:
    def __init__(s,typ,rows,lo,srd,so,stride,perm=False):
        s.typ,s.rows,s.lo,s.srd,s.so,s.stride,s.perm=typ,rows,lo,srd,so,stride,perm
        s.np=rows//8; s.adv={'KC':128,'TR':64*stride,'FL':4096}[typ]
    def dma_setup(s,k,v,nw,sw):
        n=s.np//nw; s.dv=v; s.n=n
        for j in range(n):
            d=v+j
            k(f's_mul_i32 s4, s{sw}, {n}',f's_add_u32 s4, s4, {j}')
            if s.typ=='KC':
                k(f's_lshl_b32 s4, s4, 3','v_lshrrev_b32 v1, 3, v0','v_add_u32 v1, s4, v1','v_bfe_u32 v2, v1, 1, 3','v_and_b32 v3, 7, v0','v_xor_b32 v2, v2, v3',
                  f'v_mul_u32_u24 v1, {s.stride}, v1',f'v_lshl_add_u32 v{d}, v2, 4, v1')
            elif s.typ=='FL':
                k('s_lshr_b32 s5, s4, 2',f's_mul_i32 s5, s5, {s.stride}','s_and_b32 s4, s4, 3','s_lshl_b32 s4, s4, 10','s_add_u32 s4, s4, s5',f'v_lshl_add_u32 v{d}, v0, 4, s4')
            else:
                c=s.rows//8; mg=(65536+c-1)//c
                assert all((x*mg)>>16==x//c for x in range(64*c))
                k('s_lshl_b32 s4, s4, 6','v_add_u32 v1, s4, v0',f'v_mul_u32_u24 v2, {mg}, v1','v_lshrrev_b32 v2, 16, v2',f'v_mul_u32_u24 v3, {c}, v2','v_sub_u32 v3, v1, v3')
                if s.rows in(128,256): k('v_and_b32 v4, 3, v2','v_lshlrev_b32 v4, 2, v4','v_xor_b32 v3, v3, v4')
                if s.rows==192: k('v_and_b32 v4, 2, v2','v_lshlrev_b32 v4, 1, v4','v_xor_b32 v3, v3, v4')
                k(f'v_mul_u32_u24 v2, {s.stride}, v2',f'v_lshl_add_u32 v{d}, v3, 4, v2')
        return v+n
    def dma(s,sm):
        o=[]
        for j in range(s.n):
            o.append([f's_add_u32 m0, s{sm}, s{s.sw0}'] if j==0 else [f's_add_u32 m0, m0, 1024'])
            o[-1]+=['s_nop 0',f'buffer_load_dwordx4 v{s.dv+j}, s[{s.srd}:{s.srd+3}], s{s.so} offen lds']
        o[-1].append(f's_add_u32 s{s.so}, s{s.so}, {s.adv}')
        if os.environ.get('SAME')=='2' and s.so in(50,51): o[-1]+=[f's_cmp_ge_u32 s{s.so}, {4*s.adv}',f's_cselect_b32 s{s.so}, 0, s{s.so}']
        return o
    def rd_setup(s,k,v,sb,nb,slo=None):
        s.rv=v; s.nb=nb
        if s.typ=='KC':
            k('v_and_b32 v1, 31, v0','v_bfe_u32 v2, v0, 1, 3','v_lshrrev_b32 v3, 5, v0','v_lshlrev_b32 v1, 7, v1',f's_lshl_b32 s4, s{sb}, 12',f's_add_u32 s4, s4, {s.lo}','v_add_u32 v1, s4, v1')
            k('v_bfe_u32 v2, v0, 1, 4','v_and_b32 v2, 7, v2')
            for i in range(4): k(f'v_or_b32 v4, {2*i}, v3','v_xor_b32 v4, v4, v2',f'v_lshl_add_u32 v{v+i}, v4, 4, v1')
            s.nr=4
        elif s.typ=='FL':
            k(f's_lshl_b32 s4, s{sb}, 12',f's_add_u32 s4, s4, {s.lo}',f'v_lshl_add_u32 v{v}, v0, 4, s4'); s.nr=1
        else:
            W=s.rows
            k('v_bfe_u32 v1, v0, 2, 2','v_lshrrev_b32 v2, 5, v0',f'v_lshl_add_u32 v2, v2, {2 if s.perm else 3}, v1',f'v_mul_u32_u24 v2, {2*W}, v2',
              'v_bfe_u32 v3, v0, 4, 1','v_lshl_add_u32 v2, v3, 5, v2','v_and_b32 v3, 3, v0','v_lshl_add_u32 v2, v3, 3, v2',f'v_add_u32 v2, {s.lo}, v2')
            if W==192: k('v_lshrrev_b32 v1, 1, v1')
            if W==96: k('v_mov_b32 v1, 0')
            for b in range(nb): k(f's_add_u32 s4, s{sb}, {b}','v_xor_b32 v3, s4, v1',f'v_lshl_add_u32 v{v+b}, v3, 6, v2')
            s.nr=nb
        if slo is not None:
            for i in range(s.nr): k(f'v_add_u32 v{v+i}, s{slo}, v{v+i}')
        return v+s.nr
    def rd(s,i,f):
        o=[]
        for b in range(s.nb):
            d=f+4*b
            if s.typ=='KC': o.append(f'ds_read_b128 {R(d,4)}, v{s.rv+i} offset:{b*4096}')
            elif s.typ=='FL': o.append(f'ds_read_b128 {R(d,4)}, v{s.rv} offset:{b*4096+i*1024}')
            else:
                for e in range(2): o.append(f'ds_read_b64_tr_b16 {R(d+2*e,2)}, v{s.rv+b} offset:{(16*i+e*(8 if s.perm else 4))*2*s.rows}')
        return o
    def bump(s,sd): return [f'v_add_u32 v{s.rv+i}, s{sd}, v{s.rv+i}' for i in range(s.nr)]
def pf_setup(k,specs,NS,v):
    L1,L2=k.lab(),k.lab(); k('s_bitcmp1_b32 s3, 1',f's_cbranch_scc1 {L1}')
    for i,(o,G,rk) in enumerate(specs):
        if i: k(L1+':')
        L=(o.rows*2+127)//128 if o.typ=='TR' else 32
        tot=64*L if o.typ=='TR' else o.rows; n=-(-tot//(2*G)); mg=(65536+L-1)//L
        assert n<=64 and all((x*mg)>>16==x//L for x in range(2*G*n+64))
        k(f's_lshl_b32 s4, s{rk}, 1','s_and_b32 s5, s3, 1','s_add_u32 s4, s4, s5',f's_mul_i32 s4, s4, {n}','v_add_u32 v1, s4, v0',
          f'v_mul_u32_u24 v2, {mg}, v1','v_lshrrev_b32 v2, 16, v2',f'v_mul_u32_u24 v3, {L}, v2','v_sub_u32 v3, v1, v3',f'v_mul_u32_u24 v2, {o.stride}, v2','v_lshl_add_u32 v2, v3, 7, v2',
          f's_add_u32 s4, s{o.so}, {NS*o.adv}','v_add_u32 v2, s4, v2','v_mov_b32 v3, 0x7f000000',f'v_cmp_gt_u32 vcc, {n}, v0','s_nop 1','v_cndmask_b32 v2, v3, v2, vcc',f'v_cmp_gt_u32 vcc, {tot}, v1','s_nop 1',
          f'v_cndmask_b32 v{v}, v3, v2, vcc',f's_mov_b32 s67, {o.adv}',f's_mov_b64 s[24:25], s[{o.srd}:{o.srd+1}]',f's_mov_b64 s[26:27], s[{o.srd+2}:{o.srd+3}]')
        if not i: k(f's_branch {L2}')
    k(L2+':')
def gemm(k,dops,A,B,acc,fr,NS,SS,ns,slices,dma,mma,hook=None,pf=None,spr=1,pre=None,tail=None):
    per=sum(o.n for o in dops) if dma else 0
    FP=0 if dma else int(os.environ.get('FP',2))
    def issue():
        o=[]
        pre=['s_cmp_gt_i32 s44, 0']+[f's_cselect_b32 s{x.srd+2}, s{x.srd+2}, 0' for x in dops]+['s_sub_u32 s44, s44, 1']
        for x in dops: o+=x.dma(41)
        if tail:
            pre=['s_mov_b32 s46, s44','s_sub_u32 s44, s44, 1']
            for i in range(len(o)):
                L=k.lab(); o[i]=['s_cmp_gt_i32 s46, 0',f's_cbranch_scc0 {L}']+o[i]+[L+':']
        o[0]=pre+o[0]
        o[-1]+=[f's_add_u32 s41, s41, {SS}',f's_cmp_eq_u32 s41, {SS*NS}','s_cselect_b32 s41, 0, s41']
        return o
    k(f's_mov_b32 s40, {ns}',f's_mov_b32 s44, {ns}','s_mov_b32 s41, 0','s_mov_b32 s43, 0',f's_mov_b32 s45, {SS}')
    part=lambda q: issue()[per*q//spr:per*(q+1)//spr]
    if pre: pre()
    if dma:
        for _ in range(NS-1): k(issue())
        k(part(0))
    if hook: hook()
    if pf:
        pv,D=pf; pfi=[f'buffer_load_dword v{pv+1}, v{pv}, s[24:27], 0 offen',f'v_add_u32 v{pv}, s67, v{pv}']
        for _ in range(D): k(pfi)
    if mma:
        na,nb=A.nb,B.nb; fs=4*(na+nb)
        for r in range(16*na*nb): k(f'v_mov_b32 v{acc+r}, 0')
        rds=lambda i,p: A.rd(i,fr+p*fs)+B.rd(i,fr+p*fs+4*na)
        mm=lambda p: [mf(acc+16*(a*nb+b),fr+p*fs+4*a,fr+p*fs+4*(na+b)) for a in range(na) for b in range(nb)]
    if dma: k(f's_waitcnt vmcnt({per*(NS-2)+per//spr})')
    k('s_barrier')
    if mma: k(rds(slices[0],0))
    L=k.lab(); k(L+':')
    n=len(slices); assert n%2==0
    if mma:
        for j in range(n-1):
            r=rds(slices[j+1],(j+1)&1); h=min(len(r),3)
            k(r[:h],f's_waitcnt lgkmcnt({h})',(front(mm(j&1),r[h:],FP) if FP else weave(mm(j&1),mix(r[h:],part(j+1) if dma and j+1<spr else []))))
        k(f's_add_u32 s43, s43, {SS}',f's_cmp_eq_u32 s43, {SS*NS}',f's_cselect_b32 s42, {-SS*(NS-1)}, s45','s_cselect_b32 s43, 0, s43')
        k('s_waitcnt lgkmcnt(0)',A.bump(42),B.bump(42))
    if dma: k(f's_waitcnt vmcnt({per*(NS-2)})')
    if tail: L2=k.lab(); k('s_cmp_eq_u32 s40, 2',f's_cbranch_scc0 {L2}','s_waitcnt vmcnt(4)',L2+':')
    k('s_barrier')
    f=part(0) if dma else []
    if tail: f=tail+f
    if pf: f=f+[[f's_cmp_gt_u32 s40, {NS+D}','s_cselect_b32 s26, s26, 0']+pfi]
    if mma:
        r=rds(slices[0],0); k(r[:3],front(mm(1),r[3:]+f,FP)) if FP else k(weave(mm(1),[r[:3]]+mix(r[3:],f)))
    else: k(f)
    k('s_sub_u32 s40, s40, 1','s_cmp_lg_u32 s40, 0',f's_cbranch_scc1 {L}')
    k('s_waitcnt lgkmcnt(0)' if tail else 's_waitcnt vmcnt(0) lgkmcnt(0)','s_nop 7','s_nop 7')
def prolog(k):
    k.head(); k('v_readfirstlane_b32 s3, v0','v_and_b32 v0, 63, v0','s_lshr_b32 s3, s3, 6')
def cvt8(d,a): return [f'v_cvt_pk_bf16_f32 v{d+i}, v{a+2*i}, v{a+2*i+1}' for i in range(4)]

def allred(k,v,t,rors,op='add'):
    for r in rors: k('s_nop 1',f'v_{op}_f32_dpp v{v}, v{v}, v{v} row_ror:{r} row_mask:0xf bank_mask:0xf')
    for p in (16,32): k(f'v_mov_b32 v{t}, v{v}','s_nop 1',f'v_permlane{p}_swap_b32 v{t}, v{v}','s_nop 1',f'v_{op}_f32 v{v}, v{v}, v{t}')
def rsq_eps(k,v,t):
    k(f'v_mov_b32 v{t}, 0x3727c5ac',f'v_fmac_f32 v{t}, 0x3ae38e39, v{v}',f'v_rsq_f32 v{v}, v{t}','s_nop 0',
      f'v_mul_f32 v{t}, v{t}, v{v}',f'v_mul_f32 v{t}, v{t}, v{v}',f'v_fma_f32 v{t}, v{t}, -0.5, 1.0',f'v_add_f32 v{t}, 0.5, v{t}',f'v_mul_f32 v{v}, v{v}, v{t}')
```
